```python
import torch

def _softmax(x, axis=-1):
    return torch.softmax(x, dim=axis)
def _gelu(x):
    return torch.nn.functional.gelu(x, approximate="tanh")
def _silu(x):
    return torch.nn.functional.silu(x)
def _sigmoid(x):
    return torch.sigmoid(x)
def _layernorm(x, axis=-1, eps=1e-5):
    m = x.mean(dim=axis, keepdim=True)
    v = x.var(dim=axis, keepdim=True, unbiased=False)
    return (x - m) / torch.sqrt(v + eps)
def _scatter_add(tgt, idx, src, axis=0):
    return tgt.clone().index_add_(axis, idx, src)
def _segment_sum(src, seg, n):
    out = torch.zeros((n,) + src.shape[1:], dtype=src.dtype)
    return out.index_add_(0, seg, src)
def _pad(x, pw):
    flat = tuple(v for pair in reversed(pw) for v in pair)
    return torch.nn.functional.pad(x, flat)

kernel_name = 'standalone__mixer_s_mlp__prompt'

def setup_inputs():

    _w = (lambda a: (lambda t: t.to(torch.bfloat16) if t.is_floating_point() else t)(torch.as_tensor(a)))
    B, S, D, F = 1, 2048, 448, 1792
    return {
        "x":  _w((lambda *s: torch.randn(*s, dtype=torch.bfloat16) * 0.4)(B, S, D)),
        "w1": _w((lambda *s: torch.randn(*s, dtype=torch.bfloat16) * 3.2)(D, D) * (D ** -0.5)),
        "w2": _w((lambda *s: torch.randn(*s, dtype=torch.bfloat16) * 3.2)(D, D) * (D ** -0.5)),
        "w3": _w((lambda *s: torch.randn(*s, dtype=torch.bfloat16) * 3.2)(D, F) * (D ** -0.5)),
        "w4": _w((lambda *s: torch.randn(*s, dtype=torch.bfloat16) * 0.8)(F, D) * (F ** -0.5)),
    }

def reference(x, w1, w2, w3, w4):
    B, S, D = x.shape
    h = _gelu(_layernorm(x, axis=-1) @ w1)
    c = D // 4
    g0 = _pad(h[:, :, 0*c:1*c], ((0, 0), (1, 0), (0, 0)))[:, :S, :]
    g1 = _pad(h[:, :, 1*c:2*c], ((0, 0), (0, 1), (0, 0)))[:, 1:, :]
    g2 = _pad(h[:, :, 2*c:3*c], ((0, 0), (2, 0), (0, 0)))[:, :S, :]
    g3 = _pad(h[:, :, 3*c:   ], ((0, 0), (0, 2), (0, 0)))[:, 2:, :]
    hs = torch.concatenate([g0, g1, g2, g3], axis=-1) @ w2
    x1 = x + hs
    h2 = _gelu(_layernorm(x1, axis=-1) @ w3) @ w4
    return x1 + h2
```

```python
class Asm:
    def __init__(self):
        self.l = []
        self.uid = 0
    def __call__(self, s):
        for line in s.split("\n"):
            line = line.strip()
            if line:
                self.l.append(line)
    def label(self, name):
        self.l.append(name + ":")
    def newlabel(self, p="L"):
        self.uid += 1
        return f"{p}_{self.uid}"
    def text(self):
        return "\n".join(x if x.endswith(":") else "    " + x for x in self.l)

def vr(a, n=1, t="v"):
    return f"{t}{a}" if n == 1 else f"{t}[{a}:{a+n-1}]"
def ar(a, n=1):
    return vr(a, n, "a")
def sr(a, n=1):
    return vr(a, n, "s")

HEAD = """.amdgcn_target "amdgcn-amd-amdhsa--gfx950"
"""
def kernel(name, body, vgpr=256, accum=256, sgpr=102):
    return f""".text
.globl {name}
.p2align 8
.type {name},@function
{name}:
{body}
    s_endpgm
.section .rodata,"a"
.p2align 6
.amdhsa_kernel {name}
  .amdhsa_next_free_vgpr {vgpr}
  .amdhsa_next_free_sgpr {sgpr}
  .amdhsa_accum_offset {accum}
  .amdhsa_group_segment_fixed_size 0
  .amdhsa_kernarg_size 64
  .amdhsa_user_sgpr_count 2
  .amdhsa_user_sgpr_kernarg_segment_ptr 1
  .amdhsa_system_sgpr_workgroup_id_x 1
.end_amdhsa_kernel
"""
import struct
def f2u(x):
    return struct.unpack("<I", struct.pack("<f", x))[0]
def fhex(x):
    return "0x%08x" % f2u(x)
```

```python
import sys, math
from asmlib import *

S, D, F = 2048, 448, 1792
XS = 928
XROWS = 72
LDS_X = 0
LDS_W = XROWS * XS
LDS_TOTAL = LDS_W + 448 * 128
WS_H, WS_X1, WS_H3 = 0, 2 << 20, 4 << 20
C0 = -2.0 * math.log2(math.e) * math.sqrt(2.0 / math.pi)
C1 = C0 * 0.044715

def gemm(name, a_src, a_ld, w_idx, w_ld, kchunks, nslices, ln, shift, epi, out_dst, out_ld, res_src):
    a = Asm()
    nwg = 32 * nslices
    a(f"s_cmp_ge_u32 s2, {nwg}")
    a(f"s_cbranch_scc1 {name}_end")
    a("s_load_dwordx16 s[4:19], s[0:1], 0")
    a("s_and_b32 s20, s2, 31")
    a("s_lshr_b32 s21, s2, 5")
    a("v_lshrrev_b32 v1, 6, v0")
    a("v_and_b32 v0, 63, v0")
    a("v_readfirstlane_b32 s22, v1")
    a("s_waitcnt lgkmcnt(0)")
    def srd(dst, src, nbytes):
        if src[0] == 'in':
            a(f"s_mov_b32 s{dst}, s{4+2*src[1]}"); a(f"s_mov_b32 s{dst+1}, s{5+2*src[1]}")
        elif src[0] == 'out':
            a(f"s_mov_b32 s{dst}, s14"); a(f"s_mov_b32 s{dst+1}, s15")
        else:
            a(f"s_add_u32 s{dst}, s18, {src[1]}"); a(f"s_addc_u32 s{dst+1}, s19, 0")
        a(f"s_mov_b32 s{dst+2}, {nbytes}"); a(f"s_mov_b32 s{dst+3}, 0x20000")
    srd(24, a_src, S * a_ld * 2)
    srd(28, ('in', w_idx), kchunks * 448 * w_ld * 2)
    srd(32, out_dst, S * out_ld * 2)
    if res_src: srd(36, res_src, S * D * 2)
    a("v_lshrrev_b32 v2, 3, v0")
    a("v_and_b32 v3, 7, v0")
    a("v_lshrrev_b32 v4, 1, v2"); a("v_and_b32 v4, 1, v4")
    a("s_and_b32 s40, s22, 1"); a("s_lshl_b32 s40, s40, 1")
    a("v_or_b32 v4, s40, v4")
    a("v_lshlrev_b32 v4, 1, v4")
    a("v_xor_b32 v4, v4, v3")
    a("v_lshlrev_b32 v4, 4, v4")
    a(f"v_mul_u32_u24 v5, {w_ld*2}, v2")
    a("v_add_u32 v4, v4, v5")
    a(f"s_mul_i32 s41, s22, {8*w_ld*2}")
    a("s_lshl_b32 s42, s21, 7")
    a("s_add_u32 s41, s41, s42")
    a(f"v_mul_u32_u24 v5, {a_ld*2}, v2")
    a("v_lshlrev_b32 v6, 4, v3")
    a("v_add_u32 v5, v5, v6")
    a(f"v_mul_u32_u24 v7, {XS}, v2")
    a("v_add_u32 v7, v7, v6")
    a("v_and_b32 v8, 15, v0")
    a("v_lshrrev_b32 v9, 4, v0")
    if shift:
        a("s_lshl_b32 s43, s21, 2"); a("s_add_u32 s43, s43, s22")
        a("s_mov_b32 s44, 1")
        a("s_cmp_ge_u32 s43, 7");  a("s_cselect_b32 s44, 3, s44")
        a("s_cmp_ge_u32 s43, 14"); a("s_cselect_b32 s44, 0, s44")
        a("s_cmp_ge_u32 s43, 21"); a("s_cselect_b32 s44, 4, s44")
        a("v_add_u32 v10, s44, v8")
    else:
        a("v_mov_b32 v10, v8")
    a(f"v_mul_u32_u24 v10, {XS}, v10")
    a("v_lshlrev_b32 v11, 4, v9")
    a("v_add_u32 v10, v10, v11")
    a("v_lshrrev_b32 v11, 2, v8")
    a("v_and_b32 v12, 3, v8")
    a("v_lshrrev_b32 v13, 1, v11")
    a("v_and_b32 v14, 1, v9"); a("v_lshlrev_b32 v14, 1, v14")
    a("v_or_b32 v13, v13, v14")
    a("v_xor_b32 v13, s22, v13")
    a("v_lshlrev_b32 v13, 5, v13")
    a("v_lshl_add_u32 v13, v12, 3, v13")
    a("v_lshl_add_u32 v11, v9, 3, v11")
    a("v_lshl_add_u32 v11, v11, 7, v13")
    a(f"v_add_u32 v11, {LDS_W}, v11")
    ACC = 16
    for i in range(16): a(f"v_mov_b32 v{ACC+i}, 0")
    a("s_mov_b32 s45, 0")
    a.label(f"{name}_kc")
    a("s_lshl_b32 s46, s22, 10"); a(f"s_add_u32 s46, s46, {LDS_W}")
    a("s_mov_b32 s47, s41")
    for n in range(14):
        a("s_mov_b32 m0, s46")
        a("s_add_u32 s46, s46, 4096")
        a("buffer_load_dwordx4 v4, s[28:31], s47 offen lds")
        a(f"s_add_u32 s47, s47, {32*w_ld*2}")
    a(f"s_add_u32 s41, s41, {448*w_ld*2}")
    a("s_mov_b32 s48, s22")
    a.label(f"{name}_rg")
    a("s_lshl_b32 s49, s20, 6")
    a("s_lshl_b32 s50, s48, 3")
    a("s_add_u32 s49, s49, s50")
    if shift: a("s_sub_u32 s49, s49, 2")
    a(f"s_mul_i32 s49, s49, {a_ld*2}")
    a("s_mul_i32 s50, s45, 896")
    a("s_add_u32 s49, s49, s50")
    a("v_add_u32 v12, s49, v5")
    X = 32
    for i in range(7):
        a(f"buffer_load_dwordx4 {vr(X+4*i,4)}, v12, s[24:27], 0 offen offset:{128*i}")
    a(f"s_mul_i32 s50, s48, {8*XS}")
    a("v_add_u32 v13, s50, v7")
    a("s_waitcnt vmcnt(0)")
    if ln:
        U = 64
        for i in range(28):
            a(f"v_lshlrev_b32 v{U+2*i}, 16, v{X+i}")
            a(f"v_and_b32 v{U+2*i+1}, 0xffff0000, v{X+i}")
        a(f"v_add_f32 v14, v{U}, v{U+1}")
        for i in range(2, 56): a(f"v_add_f32 v14, v14, v{U+i}")
        def allred(r):
            for m in ("quad_perm:[1,0,3,2]", "quad_perm:[2,3,0,1]", "row_half_mirror"):
                a("s_nop 1")
                a(f"v_add_f32_dpp v{r}, v{r}, v{r} {m} row_mask:0xf bank_mask:0xf")
        allred(14)
        a(f"v_mul_f32 v14, {fhex(1/448)}, v14")
        for i in range(56): a(f"v_sub_f32 v{U+i}, v{U+i}, v14")
        a(f"v_mul_f32 v15, v{U}, v{U}")
        for i in range(1, 56): a(f"v_fmac_f32 v15, v{U+i}, v{U+i}")
        allred(15)
        a(f"v_mov_b32 v14, {fhex(1e-5)}")
        a(f"v_fmac_f32 v14, {fhex(1/448)}, v15")
        a("v_rsq_f32 v14, v14")
        a("s_nop 0")
        for i in range(56): a(f"v_mul_f32 v{U+i}, v{U+i}, v14")
        for i in range(28): a(f"v_cvt_pk_bf16_f32 v{X+i}, v{U+2*i}, v{U+2*i+1}")
    for i in range(7):
        a(f"ds_write_b128 v13, {vr(X+4*i,4)} offset:{128*i}")
    a("s_add_u32 s48, s48, 4")
    a(f"s_cmp_lt_u32 s48, {9 if shift else 8}")
    a(f"s_cbranch_scc1 {name}_rg")
    a("s_waitcnt vmcnt(0) lgkmcnt(0)")
    a("s_barrier")
    FA, FB = 32, 40
    for ks in range(14):
        a(f"ds_read_b64_tr_b16 {vr(FA,2)}, v11 offset:{ks*4096}")
        a(f"ds_read_b64_tr_b16 {vr(FA+2,2)}, v11 offset:{ks*4096+512}")
        for t in range(4):
            a(f"ds_read_b128 {vr(FB+4*t,4)}, v10 offset:{t*16*XS + ks*64}")
        for t in range(4):
            a(f"s_waitcnt lgkmcnt({3-t})")
            a(f"v_mfma_f32_16x16x32_bf16 {vr(ACC+4*t,4)}, {vr(FA,4)}, {vr(FB+4*t,4)}, {vr(ACC+4*t,4)}")
    a("s_barrier")
    a("s_add_u32 s45, s45, 1")
    a(f"s_cmp_lt_u32 s45, {kchunks}")
    a(f"s_cbranch_scc1 {name}_kc")
    a("s_nop 7")
    a("s_lshl_b32 s49, s20, 6")
    a("v_add_u32 v12, s49, v8")
    a("s_lshl_b32 s50, s21, 7"); a("s_lshl_b32 s51, s22, 5"); a("s_add_u32 s50, s50, s51")
    a("v_lshl_add_u32 v13, v9, 3, s50")
    a(f"v_mul_u32_u24 v14, {out_ld*2}, v12")
    a("v_add_u32 v14, v14, v13")
    if epi == 'gelu':
        a(f"s_mov_b32 s52, {fhex(C1)}"); a(f"v_mov_b32 v15, {fhex(C0)}")
        for i in range(16):
            r = ACC + i
            a(f"v_mul_f32 v40, v{r}, v{r}")
            a("v_fma_f32 v40, v40, s52, v15")
            a(f"v_mul_f32 v40, v40, v{r}")
            a("v_exp_f32 v40, v40")
            a("s_nop 0")
            a("v_add_f32 v40, 1.0, v40")
            a("v_rcp_f32 v40, v40")
            a("s_nop 0")
            a(f"v_mul_f32 v{r}, v{r}, v40")
    else:
        a(f"v_mul_u32_u24 v15, {D*2}, v12")
        a("v_add_u32 v15, v15, v13")
        a(f"s_mov_b32 s52, 0")
        for t in range(4):
            a(f"buffer_load_dwordx2 {vr(40+2*t,2)}, v15, s[36:39], s52 offen")
            a(f"s_add_u32 s52, s52, {16*D*2}")
        a("s_waitcnt vmcnt(0)")
        for t in range(4):
            for p in range(2):
                a(f"v_lshlrev_b32 v50, 16, v{40+2*t+p}")
                a(f"v_and_b32 v51, 0xffff0000, v{40+2*t+p}")
                a(f"v_add_f32 v{ACC+4*t+2*p}, v{ACC+4*t+2*p}, v50")
                a(f"v_add_f32 v{ACC+4*t+2*p+1}, v{ACC+4*t+2*p+1}, v51")
    a("s_mov_b32 s52, 0")
    for t in range(4):
        a(f"v_cvt_pk_bf16_f32 v{60+2*t}, v{ACC+4*t}, v{ACC+4*t+1}")
        a(f"v_cvt_pk_bf16_f32 v{61+2*t}, v{ACC+4*t+2}, v{ACC+4*t+3}")
        a(f"buffer_store_dwordx2 {vr(60+2*t,2)}, v14, s[32:35], s52 offen")
        a(f"s_add_u32 s52, s52, {16*out_ld*2}")
    a.label(f"{name}_end")
    return kernel(name, a.text(), vgpr=128, accum=128), f"; @launch kernel={name} grid=({nwg},1,1) block=(256,1,1) lds={LDS_TOTAL}"

def build(extra_pre=None, extra_post=None):
    ks = [
        gemm("g1_kernel", ('in', 0), D, 1, D, 1, 7, True, True, 'gelu', ('ws', WS_H), D, None),
        gemm("g2_kernel", ('ws', WS_H), D, 2, D, 1, 7, False, False, 'res', ('ws', WS_X1), D, ('in', 0)),
        gemm("g3_kernel", ('ws', WS_X1), D, 3, F, 1, 28, True, False, 'gelu', ('ws', WS_H3), F, None),
        gemm("g4_kernel", ('ws', WS_H3), F, 4, D, 4, 7, False, False, 'res', ('out',), D, ('ws', WS_X1)),
    ]
    ks = (extra_pre or []) + ks + (extra_post or [])
    seen = []; bodies = []
    for b, l in ks:
        if b not in seen:
            seen.append(b); bodies.append(b)
    return "\n".join(l for _, l in ks) + "\n" + HEAD + "".join(bodies)

if __name__ == "__main__":
    open(sys.argv[1], "w").write(build())
```

```python
from asmlib import *
import base4
def empty(name="e_kernel"):
    return kernel(name, "    s_nop 0", vgpr=32, accum=32), f"; @launch kernel={name} grid=(224,1,1) block=(256,1,1) lds=0"
def chain(name, karg_off, n, stride, nbytes):
    a = Asm()
    a("s_cmp_ge_u32 s2, 1"); a(f"s_cbranch_scc1 {name}_end")
    a(f"s_load_dwordx2 s[4:5], s[0:1], {karg_off}")
    a("s_waitcnt lgkmcnt(0)")
    a(f"s_mov_b32 s6, {nbytes}"); a("s_mov_b32 s7, 0x20000")
    a("v_mov_b32 v1, 0"); a("s_mov_b32 s8, 0")
    a.label(f"{name}_l")
    a("buffer_load_dword v2, v1, s[4:7], 0 offen")
    a("s_waitcnt vmcnt(0)")
    a(f"v_add_u32 v1, {stride}, v1")
    a("s_add_u32 s8, s8, 1"); a(f"s_cmp_lt_u32 s8, {n}"); a(f"s_cbranch_scc1 {name}_l")
    a.label(f"{name}_end")
    return kernel(name, a.text(), vgpr=32, accum=32), f"; @launch kernel={name} grid=(1,1,1) block=(64,1,1) lds=0"
def straight(name, n, loops=1):
    a = Asm()
    a("s_mov_b32 s8, 0"); a("s_nop 0")
    a.label(f"{name}_l")
    for i in range(n): a("v_add_u32 v1, 0x12345, v1")
    a("s_add_u32 s8, s8, 1"); a(f"s_cmp_lt_u32 s8, {loops}"); a(f"s_cbranch_scc1 {name}_l")
    return kernel(name, a.text(), vgpr=32, accum=32), f"; @launch kernel={name} grid=(224,1,1) block=(64,1,1) lds=100000"
def dirty(name, kb, aux, delay):
    a = Asm()
    a("s_cmp_ge_u32 s2, 256"); a(f"s_cbranch_scc1 {name}_end")
    a("s_load_dwordx2 s[8:9], s[0:1], 56")
    a("v_lshlrev_b32 v2, 4, v0")
    a("s_waitcnt lgkmcnt(0)")
    a("s_mov_b32 s10, 0x10000000"); a("s_mov_b32 s11, 0x20000")
    a("s_lshl_b32 s23, s2, 17"); a("s_add_u32 s23, s23, 0x1000000")
    for i in range(4): a(f"v_mov_b32 v{8+i}, v0")
    for i in range(kb // 4):
        a(f"buffer_store_dwordx4 v[8:11], v2, s[8:11], s23 offen {aux}")
        a("s_add_u32 s23, s23, 4096")
    a("s_mov_b32 s24, 0")
    a.label(f"{name}_d")
    a("v_add_u32 v1, 0x12345, v1")
    a("s_add_u32 s24, s24, 1"); a(f"s_cmp_lt_u32 s24, {delay}"); a(f"s_cbranch_scc1 {name}_d")
    a("s_waitcnt vmcnt(0)")
    a.label(f"{name}_end")
    return kernel(name, a.text(), vgpr=32, accum=32), f"; @launch kernel={name} grid=(256,1,1) block=(256,1,1) lds=100000"
V = {
 "pA": base4.build(),
 "pB": base4.build(extra_post=[empty()]*4),
 "pC": base4.build(extra_pre=[chain("c_kernel", 24, 200, 4096+128, 448*1792*2)]),
 "pC0": base4.build(extra_pre=[chain("c_kernel", 24, 1, 4096+128, 448*1792*2)]),
 "pCx": base4.build(extra_pre=[chain("c_kernel", 0, 200, 4096+128, 448*2048*2)]),
 "pCw": base4.build(extra_pre=[chain("c_kernel", 56, 200, 4096+128, 1<<28)]),
 "pD1": base4.build(extra_pre=[straight("s_kernel", 4096, 1)]),
 "pD2": base4.build(extra_pre=[straight("s_kernel", 64, 64)]),
 "pE0": base4.build(extra_post=[dirty("d_kernel", 0, "", 600)]),
 "pE1": base4.build(extra_post=[dirty("d_kernel", 64, "", 600)]),
 "pE2": base4.build(extra_post=[dirty("d_kernel", 64, "sc1", 600)]),
}
for k, v in V.items():
    open(f"mb/{k}.s", "w").write(v)
```

```python
from asmlib import *
import base4
from probes import empty
def bw(name, kb, distinct):
    a = Asm()
    a("s_cmp_ge_u32 s2, 256"); a(f"s_cbranch_scc1 {name}_end")
    a("s_load_dwordx2 s[8:9], s[0:1], 56")
    a("v_lshlrev_b32 v2, 4, v0")
    a("s_waitcnt lgkmcnt(0)")
    a("s_mov_b32 s10, 0x10000000"); a("s_mov_b32 s11, 0x20000")
    if distinct == 1:
        a(f"s_mul_i32 s23, s2, {kb*1024}")
    elif distinct == 2:
        a("s_lshr_b32 s23, s2, 3"); a(f"s_mul_i32 s23, s23, {kb*1024}")
    else:
        a("s_lshr_b32 s23, s2, 3"); a("s_and_b32 s23, s23, 7"); a(f"s_mul_i32 s23, s23, {kb*1024}")
    a("s_add_u32 s23, s23, 0x2000000")
    a("s_mov_b32 s24, 0")
    a.label(f"{name}_l")
    for i in range(8):
        a("s_waitcnt vmcnt(7)")
        a(f"buffer_load_dwordx4 v[{8+4*i}:{11+4*i}], v2, s[8:11], s23 offen")
        a("s_add_u32 s23, s23, 4096")
    a("s_add_u32 s24, s24, 32"); a(f"s_cmp_lt_u32 s24, {kb}"); a(f"s_cbranch_scc1 {name}_l")
    a("s_waitcnt vmcnt(0)")
    a.label(f"{name}_end")
    return kernel(name, a.text(), vgpr=64, accum=64), f"; @launch kernel={name} grid=(256,1,1) block=(256,1,1) lds=100000"
V = {
 "qA": base4.build(extra_pre=[empty()]),
 "qB": base4.build(extra_pre=[bw("b_kernel", 32, 1)]),
 "qC": base4.build(extra_pre=[bw("b_kernel", 128, 1)]),
 "qD": base4.build(extra_pre=[bw("b_kernel", 128, 2)]),
 "qE": base4.build(extra_pre=[bw("b_kernel", 512, 0)]),
 "qF": base4.build(extra_pre=[bw("b_kernel", 32, 2)]),
}
for k, v in V.items():
    open(f"mb/{k}.s", "w").write(v)
```

```python
from asmlib import *
import base4
AMP = 48
def lat(name, which):
    a = Asm()
    a("s_cmp_ge_u32 s2, 256"); a(f"s_cbranch_scc1 {name}_end")
    def stamp(i):
        a(f"s_memtime s[{40+2*i}:{41+2*i}]"); a("s_waitcnt lgkmcnt(0)")
    stamp(0)
    a("s_load_dwordx16 s[4:19], s[0:1], 0")
    a("s_waitcnt lgkmcnt(0)")
    stamp(1)
    a("s_lshl_b32 s3, s2, 10")
    a("v_lshl_add_u32 v1, v0, 4, s3")
    for i, p in enumerate((4, 6, 10, 18, 14)):
        a(f"global_load_dwordx4 v[4:7], v1, s[{p}:{p+1}]")
        a("s_waitcnt vmcnt(0)")
        stamp(2+i)
    if which >= 0:
        a(f"s_sub_u32 s30, s{42+2*which}, s{40+2*which}")
        a(f"s_mul_i32 s30, s30, {AMP}")
        a.label(f"{name}_spin")
        a("s_memtime s[32:33]"); a("s_waitcnt lgkmcnt(0)")
        a("s_sub_u32 s32, s32, s52")
        a("s_cmp_lt_u32 s32, s30"); a(f"s_cbranch_scc1 {name}_spin")
    a.label(f"{name}_end")
    return kernel(name, a.text(), vgpr=64, accum=64), f"; @launch kernel={name} grid=(256,1,1) block=(64,1,1) lds=100000"
for i in range(-1, 6):
    open(f"r{i+1}.s", "w").write(base4.build(extra_pre=[lat("l_kernel", i)]))
```

```python
import re

REG = re.compile(r'^(-|\|)?(abs\()?([vas])(\d+|\[(\d+):(\d+)\])\)?\|?$')
def regs(tok):
    tok = tok.strip()
    if tok in ("vcc",): return [("s", "vcc")]
    if tok in ("exec",): return [("s", "exec")]
    if tok == "m0": return [("s", "m0")]
    m = REG.match(tok)
    if not m: return []
    t = m.group(3)
    if m.group(5) is not None:
        return [(t, i) for i in range(int(m.group(5)), int(m.group(6)) + 1)]
    return [(t, int(m.group(4)))]

def split_ops(s):
    out, depth, cur = [], 0, ""
    for ch in s:
        if ch in "[(": depth += 1
        if ch in "])": depth -= 1
        if ch == "," and depth == 0:
            out.append(cur.strip()); cur = ""
        else:
            cur += ch
    if cur.strip(): out.append(cur.strip())
    return out

TRANS = ("v_exp_f32", "v_log_f32", "v_rcp_f32", "v_rsq_f32", "v_sqrt_f32", "v_sin_f32", "v_cos_f32")

class I:
    __slots__ = ("text", "mn", "cls", "rd", "wr", "srcC", "srcAB", "passes", "tag", "dpp", "wide_store", "lds_dma", "store_data")
    def __init__(self, text, tag=None):
        self.text = text; self.tag = tag
        parts = text.split(None, 1)
        mn = self.mn = parts[0]
        ops = split_ops(parts[1]) if len(parts) > 1 else []
        mods = ""
        if ops:
            last = ops[-1].split(None, 1)
            ops[-1] = last[0]
            mods = last[1] if len(last) > 1 else ""
        self.rd, self.wr, self.srcC, self.srcAB = [], [], [], []
        self.passes = 0; self.dpp = False; self.wide_store = False; self.lds_dma = False; self.store_data = []
        R = lambda xs: [r for x in xs for r in regs(x)]
        if mn.startswith("v_mfma"):
            self.cls = "mfma"
            self.wr = regs(ops[0]); self.srcAB = R(ops[1:3]); self.srcC = regs(ops[3])
            self.rd = self.srcAB + self.srcC
            self.passes = 8 if "32x32" in mn else 4
        elif mn.startswith("v_"):
            self.cls = "valu"
            self.wr = regs(ops[0]); self.rd = R(ops[1:])
            if mn.startswith(("v_fmac", "v_dot2c", "v_pk_fmac", "v_writelane")): self.rd += self.wr
            if "permlane" in mn and "swap" in mn:
                self.wr = R(ops[:2]); self.rd = R(ops[:2])
            if mn.startswith(("v_add_co", "v_sub_co", "v_addc_co")):
                self.wr = R(ops[:2]); self.rd = R(ops[2:])
            if "_dpp" in mn:
                self.dpp = True; self.rd += self.wr
        elif mn.startswith("ds_"):
            self.cls = "ds"
            if mn.startswith("ds_read") or mn.startswith("ds_bpermute") or mn.startswith("ds_swizzle"):
                self.wr = regs(ops[0]); self.rd = R(ops[1:])
            else:
                self.rd = R(ops)
        elif mn.startswith(("buffer_", "global_")):
            self.cls = "vmem"
            if mn in ("buffer_wbl2", "buffer_inv"):
                pass
            elif "load" in mn:
                if re.search(r'\blds\b', mods) or "_lds_" in mn:
                    self.lds_dma = True; self.rd = R(ops) + [("s", "m0")]
                else:
                    self.wr = regs(ops[0]); self.rd = R(ops[1:])
            else:
                self.rd = R(ops)
                self.store_data = regs(ops[0]) if mn.startswith("buffer_") else regs(ops[1])
                self.wide_store = mn.endswith(("x3", "x4"))
        elif mn.startswith(("s_load", "s_memtime", "s_memrealtime", "s_atomic", "s_buffer_load")):
            self.cls = "smem"
            self.wr = regs(ops[0]); self.rd = R(ops[1:])
        elif mn in ("s_waitcnt", "s_nop", "s_barrier", "s_endpgm", "s_sleep", "s_setprio") or mn.startswith(("s_cbranch", "s_branch")):
            self.cls = "ctl"
            if "vcc" in mn: self.rd = [("s", "vcc")]
        elif mn.startswith("s_"):
            self.cls = "salu"
            if mn.startswith(("s_cmp", "s_bitcmp")):
                self.rd = R(ops)
            else:
                self.wr = regs(ops[0]); self.rd = R(ops[1:])
        else:
            raise ValueError("unknown instr " + text)
    def slots(self):
        if self.cls == "mfma": return 2
        if self.mn.startswith(TRANS): return 2
        if self.mn == "s_nop": return int(self.text.split()[1]) + 1
        return 1

class P:
    def __init__(self, kind, arg=None):
        self.kind = kind; self.arg = arg
    def slots(self): return 1 if self.kind in ("waitvm", "waitlgkm") else 0

class Prog:
    def __init__(self):
        self.items = []
        self.uid = 0
    def __call__(self, s, tag=None):
        for line in s.split("\n"):
            line = line.split(";")[0].strip()
            if line: self.items.append(I(line, tag))
        return self
    def add(self, items):
        self.items += items.items if isinstance(items, Prog) else items
    def label(self, name): self.items.append(P("label", name))
    def raw(self, text): self.items.append(P("raw", text))
    def comment(self, text): self.items.append(P("raw", "; " + text))
    def waitvm(self, tag=None): self.items.append(P("waitvm", tag))
    def waitlgkm(self, tag=None): self.items.append(P("waitlgkm", tag))
    def fence(self): self.items.append(P("fence"))
    def newlabel(self, p="L"):
        Prog._u = getattr(Prog, "_u", 0) + 1
        return f"{p}_{Prog._u}"

def finalize(prog, verbose=False):
    out = []
    vm = []
    lg = []
    hist = []
    pos = 0
    stats = {"nop": 0, "wait": 0}
    def emit(text, n=1):
        nonlocal pos
        out.append("    " + text); pos += n
    def do_wait(nvm=None, nlg=None):
        nonlocal vm, lg
        parts = []
        if nvm is not None and nvm < len(vm):
            n = min(nvm, 63); parts.append(f"vmcnt({n})"); vm = vm[len(vm) - n:] if n else []
        if nlg is not None and nlg < len(lg):
            if any(x.cls == "smem" for x in lg): nlg = 0
            n = min(nlg, 15); parts.append(f"lgkmcnt({n})"); lg = lg[len(lg) - n:] if n else []
        if parts:
            emit("s_waitcnt " + " ".join(parts)); stats["wait"] += 1
    def need_after(lst, pred):
        k = None
        for idx, x in enumerate(lst):
            if pred(x): k = idx
        return None if k is None else len(lst) - 1 - k
    for it in prog.items:
        if isinstance(it, P):
            if it.kind == "label": out.append(it.arg + ":")
            elif it.kind == "raw": out.append("    " + it.arg)
            elif it.kind == "waitvm":
                do_wait(nvm=0 if it.arg is None else need_after(vm, lambda x: x.tag == it.arg))
            elif it.kind == "waitlgkm":
                do_wait(nlg=0 if it.arg is None else need_after(lg, lambda x: x.tag == it.arg))
            elif it.kind == "fence":
                pass
            continue
        touched = set(it.rd) | set(it.wr)
        if it.mn == "s_waitcnt":
            m = re.search(r'vmcnt\((\d+)\)', it.text)
            if m: n = int(m.group(1)); vm = vm[len(vm) - n:] if n and n < len(vm) else (vm if n else [])
            m = re.search(r'lgkmcnt\((\d+)\)', it.text)
            if m: n = int(m.group(1)); lg = lg[len(lg) - n:] if n and n < len(lg) else (lg if n else [])
            emit(it.text); continue
        nvm = need_after(vm, lambda x: touched & set(x.wr))
        nlg = need_after(lg, lambda x: touched & set(x.wr))
        if it.cls == "vmem" and nvm is not None:
            nvm = need_after(vm, lambda x: set(it.rd) & set(x.wr))
        if it.cls == "ds" and nlg is not None:
            nlg = need_after(lg, lambda x: (set(it.rd) & set(x.wr)) or (x.cls == "smem" and touched & set(x.wr)))
        do_wait(nvm, nlg)
        need = 0
        rd, wr = set(it.rd), set(it.wr)
        for h, p in hist:
            d = pos - p - 1
            if d >= 20: continue
            req = 0
            hw = set(h.wr)
            if h.cls == "valu":
                hv = {r for r in hw if r[0] in "va"}
                hs = {r for r in hw if r[0] == "s"}
                isdot = h.mn.startswith("v_dot")
                if it.cls == "mfma" and hv & rd: req = max(req, 3 if isdot else 2)
                if it.cls == "valu":
                    if h.mn.startswith(TRANS) and hv & rd and not it.mn.startswith(TRANS): req = max(req, 1)
                    if (it.dpp or "permlane" in it.mn) and hv & rd: req = max(req, 2)
                    if it.mn.startswith(("v_readfirstlane", "v_readlane")) and hv & rd: req = max(req, 1)
                    if hs & rd: req = max(req, 4 if it.mn.startswith(("v_readlane", "v_writelane")) else 2)
                    if "sdwa" in h.mn and hv & (rd | wr): req = max(req, 1)
                if isdot and hv & (rd | wr):
                    same_c = False
                    if it.mn == h.mn:
                        ops = split_ops(it.text.split(None, 1)[1])
                        ab = set(regs(ops[1]) + regs(ops[2].split()[0]))
                        same_c = not (hv & ab)
                    if not same_c: req = max(req, 3)
                if it.cls == "vmem" and hs & rd: req = max(req, 5)
                if it.cls in ("salu", "smem") and hs & rd: req = max(req, 1)
            elif h.cls == "mfma":
                big = 12 if h.passes == 8 else 8
                if it.cls == "mfma":
                    if hw & set(it.srcAB): req = max(req, big)
                    if hw & set(it.srcC) and not (it.srcC == h.wr and it.passes == h.passes): req = max(req, big - 2)
                    if hw & wr and not (it.srcC == h.wr and it.passes == h.passes) and not (hw & set(it.srcC)): req = max(req, big - 2)
                elif it.cls in ("valu", "ds", "vmem"):
                    if hw & (rd | wr): req = max(req, big)
                    if set(h.srcC) & wr: req = max(req, 7 if h.passes == 8 else 3)
            elif h.cls == "vmem":
                if h.wide_store and set(h.store_data) & wr: req = max(req, 2)
            elif h.cls == "salu":
                if ("s", "m0") in hw and it.cls == "vmem" and it.lds_dma: req = max(req, 1)
            need = max(need, req - d)
        if need > 0:
            stats["nop"] += need
            while need > 0:
                n = min(need, 16); emit(f"s_nop {n-1}", n); need -= n
        hist.append((it, pos)); hist[:] = hist[-24:]
        emit(it.text, (int(it.text.split()[1]) + 1) if it.mn == "s_nop" else 1)
        if it.cls == "vmem": vm.append(it)
        elif it.cls in ("ds", "smem"): lg.append(it)
    if verbose: print("finalize:", stats, "lines", len(out))
    return "\n".join(out)

def interleave(main, fill, per=None, start=0):
    fill = list(fill.items if isinstance(fill, Prog) else fill)
    n = len(main) - start
    total = sum(x.slots() for x in fill)
    out = []; done = 0; k = 0
    for gi, g in enumerate(main):
        out += g
        if gi < start: continue
        target = total * (gi - start + 1) / n if per is None else min(total, per * (gi - start + 1))
        while k < len(fill) and done + fill[k].slots() / 2 <= target:
            out.append(fill[k]); done += fill[k].slots(); k += 1
    out += fill[k:]
    return out
```

```python
import sys, math
from asmlib import vr, ar, sr, HEAD, kernel, fhex
from sched import *

KN = "standalone__mixer_s_mlp__prompt_kernel"
S, D, F = 2048, 448, 1792
C0 = -2.0 * math.log2(math.e) * math.sqrt(2.0 / math.pi)
C1 = C0 * 0.044715

GSZ = 0x80000
O_FLAG = 0
O_H = 0x1000
O_X1 = 0x10000
O_H3 = 0x20000
O_PART = 0x60000
WS_BYTES = 32 * GSZ + 0x10000
O_EPOCH = 32 * GSZ
O_STAMP = 32 * GSZ + 0x10000
FL_H = 0; FL_X = 128; FL_3 = 512; FL_P = 512 + 16 * 128

L_XR = 0; L_W1 = 64512; L_ST1 = 121856; L_FREE = 122880; L_END = 163840
def w2_piece(n): return L_FREE + n * 1024 if n < 40 else L_W1 + (n - 40) * 1024
L_W3 = 0
L_X = [0, 32768, 65536, 98304]
L_W4 = 131072
L_RED = [0, 32768]

sX, sW1, sW2, sW3, sW4, sOUT, sWS = 20, 24, 28, 32, 36, 40, 44
sWV, sJ, sG, sPG, sHALF, sTAG, sGB, sPB, sGL = 48, 49, 50, 51, 52, 53, 54, 55, 56
sT = list(range(57, 64))
sC1 = 3
STAMP0 = 64

class Gen:
    def __init__(self, split=True, fast=True, stamps=False):
        self.split, self.fast, self.stamps = split, fast, stamps
        self.ns = 0
        self.names = []
    def stamp(self, p, name):
        if self.stamps:
            p(f"s_memtime {sr(STAMP0 + 2*self.ns, 2)}")
            self.names.append(name); self.ns += 1
            assert STAMP0 + 2*self.ns <= 102
    def poll(self, p, voff, soff, tmp):
        l = p.newlabel("Lpoll")
        p(f"s_mov_b32 s{sT[6]}, 0")
        p.label(l)
        p(f"buffer_load_dword v{tmp}, v{voff}, {sr(sWS,4)}, s{soff} offen sc1")
        p(f"s_add_u32 s{sT[6]}, s{sT[6]}, 1")
        p(f"s_cmp_gt_u32 s{sT[6]}, 0x40000")
        p("s_cbranch_scc1 Lend")
        p("s_waitcnt vmcnt(0)")
        p(f"v_cmp_ne_u32 vcc, s{sTAG}, v{tmp}")
        p(f"s_cbranch_vccnz {l}")
    def flag(self, p, soff, vtag, vzero, aux):
        p("s_mov_b64 exec, 1")
        p(f"buffer_store_dword v{vtag}, v{vzero}, {sr(sWS,4)}, s{soff} offen {aux}")
        p("s_mov_b64 exec, -1")

    def build(self):
        p = Prog()
        FA = "" if self.fast else "sc1"
        XA = "sc1" if (self.split or not self.fast) else ""
        t0, t1, t2, t3, t4, t5 = sT[:6]
        vL, vL16, vZ, vTAG, vI16, vQ, vR8, vC8, vF28, vF14, vF7 = range(0, 11)
        p("s_cmp_ge_u32 s2, 224")
        p("s_cbranch_scc1 Lend")
        self.stamp(p, "start")
        p("s_load_dwordx16 s[4:19], s[0:1], 0")
        p("v_lshrrev_b32 v1, 6, v0")
        p("v_and_b32 v0, 63, v0")
        p(f"v_readfirstlane_b32 s{sWV}, v1")
        p(f"s_lshr_b32 s{t0}, s2, 3")
        p(f"s_mul_i32 s{sGL}, s{t0}, 37"); p(f"s_lshr_b32 s{sGL}, s{sGL}, 8")
        p(f"s_mul_i32 s{t1}, s{sGL}, 7"); p(f"s_sub_u32 s{sJ}, s{t0}, s{t1}")
        p(f"s_and_b32 s{t0}, s2, 7")
        if self.split:
            p(f"s_lshr_b32 s{t1}, s{t0}, 1"); p(f"s_lshl_b32 s{t1}, s{t1}, 3")
            p(f"s_and_b32 s{t2}, s{t0}, 1"); p(f"s_add_u32 s{t1}, s{t1}, s{t2}")
            p(f"s_lshl_b32 s{t2}, s{sGL}, 1"); p(f"s_add_u32 s{sG}, s{t1}, s{t2}")
        else:
            p(f"s_lshl_b32 s{t1}, s{t0}, 2"); p(f"s_add_u32 s{sG}, s{t1}, s{sGL}")
        p(f"s_xor_b32 s{sPG}, s{sG}, 1"); p(f"s_and_b32 s{sHALF}, s{sG}, 1")
        p(f"s_lshl_b32 s{sGB}, s{sG}, 19"); p(f"s_lshl_b32 s{sPB}, s{sPG}, 19")
        p(f"s_mov_b32 s{sC1}, {fhex(C1)}")
        p(f"v_lshlrev_b32 v{vL16}, 4, v{vL}")
        p(f"v_mov_b32 v{vZ}, 0")
        p(f"v_and_b32 v{vI16}, 15, v{vL}"); p(f"v_lshrrev_b32 v{vQ}, 4, v{vL}")
        p(f"v_lshrrev_b32 v{vR8}, 3, v{vL}"); p(f"v_and_b32 v{vC8}, 7, v{vL}")
        for r, n in ((vF28, 27), (vF14, 13), (vF7, 6)):
            p(f"v_min_u32 v{r}, {n}, v{vL}"); p(f"v_lshlrev_b32 v{r}, 2, v{r}")
        vRM = 11
        p(f"v_and_b32 v20, 6, v{vR8}"); p(f"v_xor_b32 v20, v20, v{vC8}"); p("v_lshlrev_b32 v20, 4, v20")
        p(f"v_mul_u32_u24 v21, 896, v{vR8}"); p(f"v_add_u32 v{vRM}, v20, v21")
        vX0, vX1, vX2, vXE, vW1 = 12, 13, 14, 15, 16
        p(f"s_lshl_b32 s{t0}, s{sG}, 6"); p(f"s_sub_u32 s{t0}, s{t0}, 2")
        p(f"s_lshl_b32 s{t1}, s{sWV}, 3"); p(f"s_add_u32 s{t1}, s{t1}, s{t0}"); p(f"s_mul_i32 s{t1}, s{t1}, 896")
        p(f"v_add_u32 v{vX0}, s{t1}, v{vRM}")
        p(f"v_add_u32 v{vX1}, {32*896}, v{vX0}")
        p(f"s_add_u32 s{t1}, s{t0}, 64"); p(f"s_mul_i32 s{t2}, s{t1}, 896")
        p(f"v_add_u32 v{vX2}, s{t2}, v{vRM}")
        p(f"v_mov_b32 v22, 0x80000000")
        p(f"v_cmp_gt_u32 vcc, 32, v{vL}"); p(f"v_cndmask_b32 v{vX2}, v22, v{vX2}, vcc")
        p(f"s_add_u32 s{t1}, s{t1}, s{sWV}"); p(f"s_mul_i32 s{t1}, s{t1}, 896")
        p(f"v_add_u32 v{vXE}, s{t1}, v{vL16}")
        p(f"v_cmp_gt_u32 vcc, 56, v{vL}"); p(f"v_cndmask_b32 v{vXE}, v22, v{vXE}, vcc")
        p(f"v_and_b32 v20, 2, v{vR8}")
        p(f"s_and_b32 s{t1}, s{sWV}, 1"); p(f"s_lshl_b32 s{t1}, s{t1}, 2")
        p(f"v_or_b32 v20, s{t1}, v20"); p(f"v_xor_b32 v20, v20, v{vC8}"); p("v_lshlrev_b32 v20, 4, v20")
        p(f"v_add_u32 v{vW1}, v20, v21")
        p("s_waitcnt lgkmcnt(0)")
        self.stamp(p, "karg")
        for dst, src, nb in ((sX, 4, S*D*2), (sW1, 6, D*D*2), (sW2, 8, D*D*2), (sW3, 10, D*F*2), (sW4, 12, D*F*2), (sOUT, 14, S*D*2), (sWS, 18, WS_BYTES + (0x100000 if self.stamps else 0))):
            p(f"s_mov_b32 s{dst}, s{src}"); p(f"s_mov_b32 s{dst+1}, s{src+1}")
            p(f"s_mov_b32 s{dst+2}, {nb}"); p(f"s_mov_b32 s{dst+3}, 0x20000")
        p(f"s_lshr_b32 s{t0}, s{sG}, 1"); p(f"s_lshl_b32 s{t0}, s{t0}, 7"); p(f"s_add_u32 s{t0}, s{t0}, {O_EPOCH}")
        p(f"s_load_dword s{sTAG}, s[18:19], s{t0} glc")
        p(f"s_lshl_b32 s{t2}, s{sWV}, 10")
        for grp, vx in ((0, vX0), (1, vX1)):
            for i in range(7):
                p(f"s_add_u32 m0, s{t2}, {L_XR + i*9216 + grp*4096}")
                p(f"s_mov_b32 s{t1}, {i*128}")
                p(f"buffer_load_dwordx4 v{vx}, {sr(sX,4)}, s{t1} offen lds", tag=f"x{grp}")
        for k in range(2):
            p(f"s_add_u32 s{t0}, s{sWV}, {4*k}"); p(f"s_min_u32 s{t0}, s{t0}, 6")
            p(f"s_mul_i32 s{t1}, s{t0}, 9216"); p(f"s_add_u32 m0, s{t1}, {L_XR + 8192}")
            p(f"s_lshl_b32 s{t1}, s{t0}, 7")
            p(f"buffer_load_dwordx4 v{vX2}, {sr(sX,4)}, s{t1} offen lds", tag="x2")
        XE = 24
        p(f"buffer_load_dwordx4 {vr(XE,4)}, v{vXE}, {sr(sX,4)}, 0 offen")
        p(f"s_mul_i32 s{t3}, s{sWV}, {8*896}"); p(f"s_lshl_b32 s{t0}, s{sJ}, 7"); p(f"s_add_u32 s{t3}, s{t3}, s{t0}")
        for n in range(14):
            p(f"s_add_u32 m0, s{t2}, {L_W1 + n*4096}")
            p(f"s_add_u32 s{t1}, s{t3}, {n*32*896}")
            p(f"buffer_load_dwordx4 v{vW1}, {sr(sW1,4)}, s{t1} offen lds", tag="w1")
        for n in range(10):
            p(f"s_add_u32 m0, s{t2}, {L_FREE + n*4096}")
            p(f"s_add_u32 s{t1}, s{t3}, {n*32*896}")
            p(f"buffer_load_dwordx4 v{vRM}, {sr(sW2,4)}, s{t1} offen lds", tag="w2a")
        vA, vONE, vS, vSS = 17, 18, 28, 29
        p(f"v_add_u32 v{vA}, s{t2}, v{vL16}")
        p(f"v_mov_b32 v{vONE}, 0x3f803f80")
        def finish_stats(addr_reg, off):
            p(f"v_mul_f32 v{vS}, {fhex(-1/448)}, v{vS}")
            p(f"v_mul_f32 v30, v{vS}, v{vS}")
            p(f"v_mov_b32 v31, {fhex(1/448)}")
            p(f"v_fma_f32 v{vSS}, v{vSS}, v31, -v30")
            p(f"v_max_f32 v{vSS}, 0, v{vSS}")
            p(f"v_add_f32 v{vSS}, {fhex(1e-5)}, v{vSS}")
            p(f"v_rsq_f32 v{vSS}, v{vSS}")
            p("s_nop 0")
            p(f"ds_write_b64 v{addr_reg}, {vr(vS,2)} offset:{off}")
        DPP8 = ("quad_perm:[1,0,3,2]", "quad_perm:[2,3,0,1]", "row_half_mirror")
        vSA = 19
        p(f"s_lshl_b32 s{t0}, s{sWV}, 6"); p(f"s_add_u32 s{t0}, s{t0}, {L_ST1}")
        p(f"v_lshl_add_u32 v{vSA}, v{vR8}, 3, s{t0}")
        XB = 32
        for grp in range(2):
            p.waitvm(f"x{grp}")
            if grp == 0: self.stamp(p, "x0")
            for i in range(7):
                p(f"ds_read_b128 {vr(XB+4*i,4)}, v{vA} offset:{L_XR + i*9216 + grp*4096}")
            for i in range(28):
                p(f"v_dot2_f32_bf16 v{vS}, v{XB+i}, v{vONE}, {'0' if i == 0 else 'v%d' % vS}")
                p(f"v_dot2_f32_bf16 v{vSS}, v{XB+i}, v{XB+i}, {'0' if i == 0 else 'v%d' % vSS}")
            for m in DPP8:
                for r in (vS, vSS):
                    p(f"v_add_f32_dpp v{r}, v{r}, v{r} {m} row_mask:0xf bank_mask:0xf")
            finish_stats(vSA, grp * 256)
        for i in range(4):
            p(f"v_dot2_f32_bf16 v{vS}, v{XE+i}, v{vONE}, {'0' if i == 0 else 'v%d' % vS}")
            p(f"v_dot2_f32_bf16 v{vSS}, v{XE+i}, v{XE+i}, {'0' if i == 0 else 'v%d' % vSS}")
        for m in DPP8 + ("row_mirror",):
            for r in (vS, vSS):
                p(f"v_add_f32_dpp v{r}, v{r}, v{r} {m} row_mask:0xf bank_mask:0xf")
        for sw in ("v_permlane16_swap_b32", "v_permlane32_swap_b32"):
            p(f"v_mov_b32 v30, v{vS}"); p(f"v_mov_b32 v31, v{vSS}")
            p(f"{sw} v{vS}, v30"); p(f"{sw} v{vSS}, v31")
            p(f"v_add_f32 v{vS}, v{vS}, v30"); p(f"v_add_f32 v{vSS}, v{vSS}, v31")
        p(f"s_lshl_b32 s{t0}, s{sWV}, 3"); p(f"s_add_u32 s{t0}, s{t0}, {L_ST1 + 512}")
        p(f"v_mov_b32 v{vSA}, s{t0}")
        finish_stats(vSA, 0)
        p(f"s_add_u32 s{sTAG}, s{sTAG}, 0x9e3779b9")
        p(f"v_mov_b32 v{vTAG}, s{sTAG}")
        vB0, vB1, vAW, vST = 12, 13, 14, 15
        p(f"s_lshl_b32 s{t0}, s{sJ}, 2"); p(f"s_add_u32 s{t0}, s{t0}, s{sWV}")
        p(f"s_mov_b32 s{t1}, 1")
        for thr, val in ((7, 3), (14, 0), (21, 4)):
            p(f"s_cmp_ge_u32 s{t0}, {thr}"); p(f"s_cselect_b32 s{t1}, {val}, s{t1}")
        p(f"v_add_u32 v20, s{t1}, v{vI16}")
        p(f"v_and_b32 v21, 6, v20"); p(f"v_xor_b32 v21, v21, v{vQ}"); p("v_lshlrev_b32 v21, 4, v21")
        p(f"v_lshl_add_u32 v{vB0}, v20, 7, v21")
        p(f"v_xor_b32 v{vB1}, 64, v{vB0}")
        p(f"v_lshlrev_b32 v{vST}, 3, v20"); p(f"v_add_u32 v{vST}, {L_ST1}, v{vST}")
        p(f"v_lshrrev_b32 v20, 2, v{vI16}"); p(f"v_and_b32 v21, 3, v{vI16}")
        p(f"v_lshrrev_b32 v22, 1, v20"); p(f"v_and_b32 v23, 1, v{vQ}"); p("v_lshl_or_b32 v22, v23, 1, v22")
        vG = 16
        p(f"v_mov_b32 v{vG}, v22")
        p(f"v_xor_b32 v22, s{sWV}, v22"); p("v_lshlrev_b32 v22, 5, v22"); p("v_lshl_add_u32 v22, v21, 3, v22")
        p(f"v_lshl_add_u32 v23, v{vQ}, 3, v20"); p("v_lshl_add_u32 v22, v23, 7, v22")
        p(f"v_add_u32 v{vAW}, {L_W1}, v22")
        p.waitvm("w1"); p.waitlgkm()
        self.stamp(p, "w1")
        p("s_barrier")
        WF = 32
        for ks in range(14):
            p(f"ds_read_b64_tr_b16 {vr(WF+4*ks,2)}, v{vAW} offset:{ks*4096}")
            p(f"ds_read_b64_tr_b16 {vr(WF+4*ks+2,2)}, v{vAW} offset:{ks*4096+512}")
        ONES = 88; CS = 92; ACC = 96; BF = 112; STT = 144; RES = 152
        for i in range(4): p(f"v_mov_b32 v{ONES+i}, 0x3f803f80")
        for t in range(4): p(f"ds_read_b64 {vr(STT+2*t,2)}, v{vST} offset:{t*128}")
        p(f"s_lshl_b32 s{t0}, s{sWV}, 4"); p(f"s_add_u32 s{t0}, s{t0}, 2")
        p(f"v_add_u32 v20, s{t0}, v{vI16}")
        p(f"v_and_b32 v21, 6, v20"); p(f"v_lshrrev_b32 v22, 1, v{vQ}"); p("v_or_b32 v21, v21, v22"); p("v_lshlrev_b32 v21, 4, v21")
        p(f"v_and_b32 v22, 1, v{vQ}"); p("v_lshl_add_u32 v21, v22, 3, v21")
        p("v_lshl_add_u32 v21, v20, 7, v21")
        p(f"s_mul_i32 s{t0}, s{sJ}, 9216"); p(f"v_add_u32 v21, s{t0}, v21")
        for T in range(4):
            p(f"v_xor_b32 v22, {32*T}, v21")
            p(f"ds_read_b64 {vr(RES+2*T,2)}, v22 offset:{L_XR}")
        for ks in range(14):
            p(f"v_mfma_f32_16x16x32_bf16 {vr(CS,4)}, {vr(WF+4*ks,4)}, {vr(ONES,4)}, {'0' if ks == 0 else vr(CS,4)}")
        p.waitlgkm()
        p("s_barrier")
        for n in range(10, 14):
            p(f"s_add_u32 m0, s{t2}, {L_W1 + (n-10)*4096}")
            p(f"s_add_u32 s{t1}, s{t3}, {n*32*896}")
            p(f"buffer_load_dwordx4 v{vRM}, {sr(sW2,4)}, s{t1} offen lds", tag="w2b")
        seq = [(ks, t) for ks in range(14) for t in range(4)]
        def bread(n):
            ks, t = seq[n]
            p(f"ds_read_b128 {vr(BF+4*(n%8),4)}, v{vB1 if ks & 1 else vB0} offset:{L_XR + (ks>>1)*9216 + t*2048}")
        for n in range(6): bread(n)
        for n, (ks, t) in enumerate(seq):
            p(f"v_mfma_f32_16x16x32_bf16 {vr(ACC+4*t,4)}, {vr(WF+4*ks,4)}, {vr(BF+4*(n%8),4)}, {'0' if ks == 0 else vr(ACC+4*t,4)}")
            if n + 6 < 56: bread(n + 6)
        self.stamp(p, "g1")
        vC0 = 20; TM = 112
        p(f"v_mov_b32 v{vC0}, {fhex(C0)}"); p(f"v_mov_b32 v{vC0+1}, {fhex(C1)}")
        p(f"v_mov_b32 v22, 1.0")
        prs = [(t, e) for t in range(4) for e in range(2)]
        def pk(fmt):
            for n, (t, e) in enumerate(prs):
                p(fmt.format(a=vr(ACC+4*t+2*e, 2), cs=vr(CS+2*e, 2), st=vr(STT+2*t, 2), tm=vr(TM+2*n, 2), c=vr(vC0, 2), one=vr(22, 2)))
        pk("v_pk_fma_f32 {a}, {cs}, {st}, {a} op_sel_hi:[1,0,1]")
        pk("v_pk_mul_f32 {a}, {a}, {st} op_sel:[0,1] op_sel_hi:[1,1]")
        pk("v_pk_mul_f32 {tm}, {a}, {a}")
        pk("v_pk_fma_f32 {tm}, {tm}, {c}, {c} op_sel:[0,1,0] op_sel_hi:[1,1,0]")
        pk("v_pk_mul_f32 {tm}, {tm}, {a}")
        for i in range(16): p(f"v_exp_f32 v{TM+i}, v{TM+i}")
        pk("v_pk_add_f32 {tm}, {tm}, {one} op_sel_hi:[1,0]")
        for i in range(16): p(f"v_rcp_f32 v{TM+i}, v{TM+i}")
        pk("v_pk_mul_f32 {a}, {a}, {tm}")
        HP = 128
        for P_ in range(2):
            for e in range(2):
                p(f"v_cvt_pk_bf16_f32 v{HP+4*P_+e}, v{ACC+8*P_+2*e}, v{ACC+8*P_+2*e+1}")
                p(f"v_cvt_pk_bf16_f32 v{HP+4*P_+2+e}, v{ACC+8*P_+4+2*e}, v{ACC+8*P_+4+2*e+1}")
        p(f"v_lshrrev_b32 v20, 5, v{vL}"); p("v_mul_u32_u24 v20, 14336, v20")
        p(f"v_and_b32 v21, 31, v{vL}"); p("v_lshl_add_u32 v20, v21, 4, v20")
        p(f"s_lshl_b32 s{t0}, s{sJ}, 2"); p(f"s_add_u32 s{t0}, s{t0}, s{sWV}")
        p(f"s_lshl_b32 s{t1}, s{t0}, 9"); p(f"s_add_u32 s{t1}, s{t1}, s{sGB}"); p(f"s_add_u32 s{t1}, s{t1}, {O_H}")
        for P_ in range(2):
            for e in range(2):
                p(f"v_permlane32_swap_b32 v{HP+4*P_+e}, v{HP+4*P_+2+e}")
            p(f"buffer_store_dwordx4 {vr(HP+4*P_,4)}, v20, {sr(sWS,4)}, s{t1} offen {FA}")
            p(f"s_add_u32 s{t1}, s{t1}, {2*14336}")
        p(f"s_lshl_b32 s{t0}, s{t0}, 2"); p(f"s_add_u32 s{t0}, s{t0}, s{sGB}"); p(f"s_add_u32 s{t0}, s{t0}, {O_FLAG + FL_H}")
        p.waitvm()
        self.flag(p, t0, vTAG, vZ, FA)
        self.stamp(p, "hpub")
        p("s_barrier")
        vT = [12, 13, 14, 15]
        p(f"v_lshrrev_b32 v20, 2, v{vI16}"); p(f"v_and_b32 v21, 3, v{vI16}")
        p(f"v_and_b32 v22, 1, v{vQ}"); p("v_lshl_add_u32 v20, v22, 2, v20")
        p(f"v_lshrrev_b32 v22, 1, v{vQ}"); p("v_lshl_add_u32 v20, v22, 4, v20")
        p("v_lshlrev_b32 v20, 7, v20"); p("v_lshl_add_u32 v20, v21, 3, v20")
        p(f"v_lshl_add_u32 v20, v{vG}, 5, v20")
        def w2f(ks, T):
            n = ks * 4 + T
            return (ar(112 + 4*n, 4), ar(112 + 4*n, 2), ar(114 + 4*n, 2)) if n < 28 else (vr(32 + 4*(n-28), 4), vr(32 + 4*(n-28), 2), vr(34 + 4*(n-28), 2))
        for base, kss in ((L_FREE, range(0, 10)), (L_W1 - 40960, range(10, 14))):
            for T in range(4):
                p(f"v_xor_b32 v{vT[T]}, {32*T}, v20"); p(f"v_add_u32 v{vT[T]}, {base}, v{vT[T]}")
            for ks in kss:
                for T in range(4):
                    _, lo, hi = w2f(ks, T)
                    p(f"ds_read_b64_tr_b16 {lo}, v{vT[T]} offset:{ks*4096}")
                    p(f"ds_read_b64_tr_b16 {hi}, v{vT[T]} offset:{ks*4096+1024}")
        AC2 = 160; HF = 176
        for T in range(4):
            for e in range(2):
                p(f"v_lshlrev_b32 v{AC2+4*T+2*e}, 16, v{RES+2*T+e}")
                p(f"v_and_b32 v{AC2+4*T+2*e+1}, 0xffff0000, v{RES+2*T+e}")
        p.waitlgkm()
        p("s_barrier")
        self.stamp(p, "w2")
        p(f"s_add_u32 s{t0}, s{sGB}, {O_FLAG + FL_H}")
        self.poll(p, vF28, t0, 20)
        self.stamp(p, "hseen")
        p(f"s_mul_i32 s{t0}, s{sWV}, 14336"); p(f"s_add_u32 s{t0}, s{t0}, s{sGB}"); p(f"s_add_u32 s{t0}, s{t0}, {O_H}")
        for ks in range(14):
            if ks % 4 == 0 and ks: p(f"s_add_u32 s{t0}, s{t0}, 4096")
            p(f"buffer_load_dwordx4 {vr(HF+4*ks,4)}, v{vL16}, {sr(sWS,4)}, s{t0} offen offset:{(ks%4)*1024} sc1")
        for ks in range(14):
            for T in range(4):
                p(f"v_mfma_f32_16x16x32_bf16 {vr(AC2+4*T,4)}, {w2f(ks,T)[0]}, {vr(HF+4*ks,4)}, {vr(AC2+4*T,4)}")
        self.stamp(p, "g2")
        XP = 144
        for i in range(8): p(f"v_cvt_pk_bf16_f32 v{XP+i}, v{AC2+2*i}, v{AC2+2*i+1}")
        p(f"v_lshlrev_b32 v20, 9, v{vQ}"); p(f"v_lshl_add_u32 v20, v{vI16}, 4, v20")
        p(f"s_lshr_b32 s{t0}, s{sWV}, 1"); p(f"s_lshl_b32 s{t0}, s{t0}, 15"); p(f"s_add_u32 s{t0}, s{t0}, s{sGB}"); p(f"s_add_u32 s{t0}, s{t0}, {O_X1}")
        p(f"s_and_b32 s{t4}, s{sWV}, 1")
        p(f"s_lshl_b32 s{t1}, s{sJ}, 12"); p(f"s_add_u32 s{t1}, s{t1}, s{t0}"); p(f"s_lshl_b32 s{t5}, s{t4}, 8"); p(f"s_add_u32 s{t1}, s{t1}, s{t5}")
        for b in range(2):
            p(f"buffer_store_dwordx4 {vr(XP+4*b,4)}, v20, {sr(sWS,4)}, s{t1} offen offset:{2048*b} {XA}")
        for i in range(8):
            p(f"v_dot2_f32_bf16 v{vS}, v{XP+i}, v{vONE}, {'0' if i == 0 else 'v%d' % vS}")
            p(f"v_dot2_f32_bf16 v{vSS}, v{XP+i}, v{XP+i}, {'0' if i == 0 else 'v%d' % vSS}")
        p(f"v_permlane32_swap_b32 v{vS}, v{vSS}")
        p(f"v_add_f32 v{vS}, v{vS}, v{vSS}"); p(f"v_mov_b32 v{vSS}, v{vS}")
        p(f"v_permlane16_swap_b32 v{vS}, v{vSS}")
        p(f"v_add_f32 v{vS}, v{vS}, v{vSS}")
        p(f"v_lshrrev_b32 v20, 5, v{vL}"); p("v_lshlrev_b32 v20, 7, v20"); p(f"v_lshl_add_u32 v20, v{vI16}, 2, v20")
        p(f"s_lshl_b32 s{t1}, s{sJ}, 8"); p(f"s_add_u32 s{t1}, s{t1}, s{t0}"); p(f"s_lshl_b32 s{t5}, s{t4}, 6"); p(f"s_add_u32 s{t1}, s{t1}, s{t5}")
        p(f"s_add_u32 s{t1}, s{t1}, 28672")
        p(f"buffer_store_dword v{vS}, v20, {sr(sWS,4)}, s{t1} offen {XA}")
        p(f"s_lshr_b32 s{t0}, s{sWV}, 1"); p(f"s_lshl_b32 s{t0}, s{t0}, 7")
        p(f"s_lshl_b32 s{t1}, s{sJ}, 1"); p(f"s_add_u32 s{t1}, s{t1}, s{t4}"); p(f"s_lshl_b32 s{t1}, s{t1}, 2")
        p(f"s_add_u32 s{t0}, s{t0}, s{t1}"); p(f"s_add_u32 s{t0}, s{t0}, s{sGB}"); p(f"s_add_u32 s{t0}, s{t0}, {O_FLAG + FL_X}")
        p.waitvm()
        self.flag(p, t0, vTAG, vZ, XA)
        self.stamp(p, "xpub")
        vW3 = 12
        p(f"v_lshrrev_b32 v20, 2, v{vL}"); p("v_and_b32 v20, 3, v20"); p(f"v_xor_b32 v20, v20, v{vQ}"); p("v_lshlrev_b32 v20, 6, v20")
        p(f"v_and_b32 v21, 3, v{vL}"); p("v_lshl_add_u32 v20, v21, 4, v20")
        p(f"v_mul_u32_u24 v21, 3584, v{vQ}"); p(f"v_add_u32 v{vW3}, v20, v21")
        p(f"s_mul_i32 s{t3}, s{sHALF}, 1792"); p(f"s_lshl_b32 s{t0}, s{sJ}, 8"); p(f"s_add_u32 s{t3}, s{t3}, s{t0}")
        p(f"s_mul_i32 s{t0}, s{sWV}, {4*3584}"); p(f"s_add_u32 s{t3}, s{t3}, s{t0}")
        for n in range(28):
            p(f"s_add_u32 m0, s{t2}, {L_W3 + n*4096}")
            p(f"s_add_u32 s{t1}, s{t3}, {n*16*3584}")
            p(f"buffer_load_dwordx4 v{vW3}, {sr(sW3,4)}, s{t1} offen lds", tag="w3")
        vA3, vA3b = 13, 14
        p(f"v_lshrrev_b32 v20, 2, v{vI16}"); p(f"v_and_b32 v21, 3, v{vI16}")
        p(f"v_xor_b32 v22, s{sWV}, v20"); p("v_lshlrev_b32 v22, 6, v22"); p("v_lshl_add_u32 v22, v21, 3, v22")
        p(f"v_and_b32 v23, 1, v{vQ}"); p("v_lshl_add_u32 v22, v23, 5, v22")
        p(f"v_lshrrev_b32 v23, 1, v{vQ}"); p("v_lshl_add_u32 v23, v23, 2, v20")
        p(f"v_lshl_add_u32 v{vA3}, v23, 8, v22")
        p(f"v_add_u32 v{vA3b}, {7*8192}, v{vA3}")
        p.waitvm()
        p("s_barrier")
        for s in range(28):
            B, s_ = s >> 1, s & 1
            base, off = (vA3, B*8192) if B < 7 else (vA3b, (B-7)*8192)
            p(f"ds_read_b64_tr_b16 {ar(4*s,2)}, v{base} offset:{L_W3 + off + s_*2048}")
            p(f"ds_read_b64_tr_b16 {ar(4*s+2,2)}, v{base} offset:{L_W3 + off + s_*2048 + 4096}")
        CS3 = 32; ONES = 24
        for i in range(4): p(f"v_mov_b32 v{ONES+i}, 0x3f803f80")
        for s in range(28):
            p(f"v_mfma_f32_32x32x16_bf16 {vr(CS3,16)}, {ar(4*s,4)}, {vr(ONES,4)}, {'0' if s == 0 else vr(CS3,16)}")
        p("s_barrier")
        self.stamp(p, "w3")
        vW4, vA4a, vA4b = 12, 13, 14
        p(f"v_and_b32 v20, 2, v{vR8}"); p("v_lshlrev_b32 v20, 1, v20"); p(f"v_xor_b32 v20, v20, v{vC8}"); p("v_lshlrev_b32 v20, 4, v20")
        p(f"v_mul_u32_u24 v21, 896, v{vR8}"); p(f"v_add_u32 v{vW4}, v20, v21")
        p(f"v_lshrrev_b32 v20, 2, v{vI16}"); p(f"v_and_b32 v21, 3, v{vI16}")
        p("v_lshrrev_b32 v22, 1, v20"); p("v_lshlrev_b32 v22, 6, v22"); p("v_lshl_add_u32 v22, v21, 3, v22")
        p(f"v_and_b32 v23, 1, v{vQ}"); p("v_lshl_add_u32 v22, v23, 5, v22")
        p(f"v_lshrrev_b32 v23, 1, v{vQ}"); p("v_lshl_add_u32 v23, v23, 2, v20")
        p("v_lshl_add_u32 v22, v23, 7, v22")
        p(f"s_lshl_b32 s{t4}, s{sWV}, 13"); p(f"s_add_u32 s{t4}, s{t4}, {L_W4}")
        p(f"v_add_u32 v{vA4a}, s{t4}, v22"); p(f"v_xor_b32 v{vA4b}, 64, v{vA4a}")
        p(f"s_mul_i32 s{t3}, s{sHALF}, 896"); p(f"s_lshl_b32 s{t0}, s{sWV}, 5"); p(f"s_add_u32 s{t3}, s{t3}, s{t0}")
        p(f"s_mul_i32 s{t3}, s{t3}, 896"); p(f"s_lshl_b32 s{t0}, s{sJ}, 7"); p(f"s_add_u32 s{t3}, s{t3}, s{t0}")
        def rot7(dst, k):
            p(f"s_add_u32 s{dst}, s{sJ}, {k}"); p(f"s_sub_u32 s{t5}, s{dst}, 7"); p(f"s_cmp_ge_u32 s{dst}, 7"); p(f"s_cselect_b32 s{dst}, s{t5}, s{dst}")
        def w4f(pp, s_, dt): return 112 + 16*pp + 8*s_ + 4*dt
        for pp in range(7):
            rot7(t0, pp)
            p(f"s_mul_i32 s{t0}, s{t0}, {128*896}"); p(f"s_add_u32 s{t0}, s{t0}, s{t3}")
            slot = (pp & 1) * 4096
            p.waitlgkm()
            for n in range(4):
                p(f"s_add_u32 m0, s{t4}, {slot + n*1024}")
                p(f"s_add_u32 s{t1}, s{t0}, {n*8*896}")
                p(f"buffer_load_dwordx4 v{vW4}, {sr(sW4,4)}, s{t1} offen lds", tag=f"w4_{pp}")
            p.waitvm()
            for s_ in range(2):
                for dt in range(2):
                    r = w4f(pp, s_, dt)
                    p(f"ds_read_b64_tr_b16 {ar(r,2)}, v{vA4b if dt else vA4a} offset:{slot + s_*2048}")
                    p(f"ds_read_b64_tr_b16 {ar(r+2,2)}, v{vA4b if dt else vA4a} offset:{slot + s_*2048 + 1024}")
        self.stamp(p, "w4")
        vSTO, vXa, vXb, vL4 = 12, 13, 14, 15
        p(f"s_cmp_eq_u32 s{sWV}, 3"); p(f"s_cselect_b32 s{t0}, 16, 32")
        p(f"v_mov_b32 v22, 0x80000000")
        p(f"v_cmp_gt_u32 vcc, s{t0}, v{vL}"); p(f"v_cndmask_b32 v{vSTO}, v22, v{vL16}, vcc")
        p(f"v_mov_b32 v{vXa}, v{vL16}"); p(f"v_add_u32 v{vXb}, 65536, v{vL16}")
        p(f"v_lshlrev_b32 v{vL4}, 2, v{vL}")
        A3 = 48; XF = 64; OWN = 96; TM = 128; MS = 144; RS = 152
        p(f"v_mov_b32 v23, {fhex(C0)}")
        for tt in range(4):
            gb = sGB if tt < 2 else sPB
            p(f"s_add_u32 s{t0}, s{gb}, {O_FLAG + FL_X + (tt&1)*128}")
            self.poll(p, vF14, t0, 20)
            p(f"s_mul_i32 s{t0}, s{sWV}, 7168"); p(f"s_add_u32 s{t1}, s{t0}, s{gb}"); p(f"s_add_u32 s{t1}, s{t1}, {O_X1 + (tt&1)*32768}")
            for n in range(7):
                p(f"s_add_u32 m0, s{t0}, {L_X[tt] + (n//4)*4096}")
                if n == 4: p(f"s_add_u32 s{t1}, s{t1}, 4096")
                p(f"buffer_load_dwordx4 v{vL16}, {sr(sWS,4)}, s{t1} offen offset:{(n%4)*1024} sc1 lds")
            p(f"s_add_u32 m0, s{t2}, {L_X[tt] + 28672}")
            p(f"s_lshl_b32 s{t1}, s{sWV}, 9"); p(f"s_add_u32 s{t1}, s{t1}, s{gb}"); p(f"s_add_u32 s{t1}, s{t1}, {O_X1 + (tt&1)*32768 + 28672}")
            p(f"buffer_load_dwordx4 v{vSTO}, {sr(sWS,4)}, s{t1} offen sc1 lds")
            p.waitvm()
            p("s_barrier")
            if tt == 0: self.stamp(p, "x1_0")
            xb, xo = (vXa, L_X[tt]) if tt < 2 else (vXb, L_X[tt] - 65536)
            p(f"v_add_u32 v20, {L_X[tt] + 28672}, v{vL4}")
            for w in range(4):
                p(f"ds_read2st64_b32 {vr(TM+2*w,2)}, v20 offset0:{4*w} offset1:{4*w+1}")
            if tt >= 2:
                p(f"v_lshrrev_b32 v20, 2, v{vC8}"); p(f"v_and_b32 v21, 1, v{vC8}"); p("v_lshl_add_u32 v20, v20, 1, v21"); p("v_lshlrev_b32 v20, 10, v20")
                p(f"v_and_b32 v21, 2, v{vC8}"); p("v_lshl_add_u32 v20, v21, 2, v20")
                p(f"v_lshl_add_u32 v20, v{vR8}, 4, v20")
                p(f"s_lshl_b32 s{t0}, s{sJ}, 12"); p(f"s_lshl_b32 s{t1}, s{sWV}, 7"); p(f"s_add_u32 s{t0}, s{t0}, s{t1}"); p(f"s_add_u32 s{t0}, s{t0}, {L_X[tt]}")
                p(f"v_add_u32 v20, s{t0}, v20")
                p(f"ds_read_b64 {vr(RS+4*(tt-2),2)}, v20"); p(f"ds_read_b64 {vr(RS+4*(tt-2)+2,2)}, v20 offset:512")
            for i in range(1, 8): p(f"v_add_f32 v{TM}, v{TM}, v{TM+i}")
            p(f"v_mov_b32 v{TM+1}, v{TM}")
            p(f"v_permlane32_swap_b32 v{TM}, v{TM+1}")
            p(f"v_mul_f32 v{MS}, {fhex(-1/448)}, v{TM}")
            p(f"v_mul_f32 v{TM}, v{MS}, v{MS}")
            p(f"v_mov_b32 v{TM+2}, {fhex(1/448)}")
            p(f"v_fma_f32 v{MS+1}, v{TM+1}, v{TM+2}, -v{TM}")
            p(f"v_max_f32 v{MS+1}, 0, v{MS+1}"); p(f"v_add_f32 v{MS+1}, {fhex(1e-5)}, v{MS+1}"); p(f"v_rsq_f32 v{MS+1}, v{MS+1}")
            def xread(s): p(f"ds_read_b128 {vr(XF+4*(s%8),4)}, v{xb} offset:{xo + s*1024}")
            for s in range(4): xread(s)
            for s in range(28):
                p(f"v_mfma_f32_32x32x16_bf16 {vr(A3,16)}, {ar(4*s,4)}, {vr(XF+4*(s%8),4)}, {'0' if s == 0 else vr(A3,16)}")
                if s + 4 < 28: xread(s + 4)
            for i in range(16): p(f"v_fmac_f32 v{A3+i}, v{CS3+i}, v{MS}")
            for i in range(16): p(f"v_mul_f32 v{A3+i}, v{A3+i}, v{MS+1}")
            for i in range(16): p(f"v_mul_f32 v{TM+i}, v{A3+i}, v{A3+i}")
            for i in range(16): p(f"v_fma_f32 v{TM+i}, v{TM+i}, s{sC1}, v23")
            for i in range(16): p(f"v_mul_f32 v{TM+i}, v{TM+i}, v{A3+i}")
            for i in range(16): p(f"v_exp_f32 v{TM+i}, v{TM+i}")
            for i in range(16): p(f"v_add_f32 v{TM+i}, 1.0, v{TM+i}")
            for i in range(16): p(f"v_rcp_f32 v{TM+i}, v{TM+i}")
            for i in range(16): p(f"v_mul_f32 v{A3+i}, v{A3+i}, v{TM+i}")
            for i in range(8): p(f"v_cvt_pk_bf16_f32 v{OWN+8*tt+i}, v{A3+2*i}, v{A3+2*i+1}")
            p(f"s_mul_i32 s{t0}, s{sWV}, 14336"); p(f"s_lshl_b32 s{t1}, s{sJ}, 11"); p(f"s_add_u32 s{t0}, s{t0}, s{t1}")
            p(f"s_add_u32 s{t0}, s{t0}, s{sGB}"); p(f"s_add_u32 s{t0}, s{t0}, {O_H3 + tt*0x10000}")
            for s_ in range(2):
                p(f"buffer_store_dwordx4 {vr(OWN+8*tt+4*s_,4)}, v{vL16}, {sr(sWS,4)}, s{t0} offen offset:{1024*s_} sc1")
            p(f"s_lshl_b32 s{t0}, s{sWV}, 7"); p(f"s_lshl_b32 s{t1}, s{sJ}, 2"); p(f"s_add_u32 s{t0}, s{t0}, s{t1}")
            p(f"s_add_u32 s{t0}, s{t0}, s{sGB}"); p(f"s_add_u32 s{t0}, s{t0}, {O_FLAG + FL_3 + tt*512}")
            p.waitvm()
            self.flag(p, t0, vTAG, vZ, FA)
        self.stamp(p, "g3")
        p.waitlgkm()
        p("s_barrier")
        A4 = 32; HF = 160; RD = 64; PT = 128
        vRW, vRR0, vRR1, vO = 12, 13, 14, 15
        p(f"v_and_b32 v20, 31, v{vL}"); p(f"v_lshrrev_b32 v21, 5, v{vL}"); p(f"v_xor_b32 v21, v21, v{vC8}"); p("v_lshlrev_b32 v21, 4, v21")
        p("v_lshl_add_u32 v20, v20, 8, v21"); p(f"s_lshl_b32 s{t0}, s{sWV}, 13"); p(f"v_add_u32 v{vRW}, s{t0}, v20")
        p(f"v_lshlrev_b32 v20, 1, v{vC8}"); p(f"v_xor_b32 v20, v20, v{vR8}"); p("v_lshlrev_b32 v20, 4, v20")
        p(f"v_lshl_add_u32 v20, v{vR8}, 8, v20"); p(f"s_lshl_b32 s{t0}, s{sWV}, 11"); p(f"v_add_u32 v{vRR0}, s{t0}, v20"); p(f"v_xor_b32 v{vRR1}, 16, v{vRR0}")
        p(f"v_mul_u32_u24 v20, 896, v{vR8}"); p(f"v_lshl_add_u32 v{vO}, v{vC8}, 4, v20")
        for tt in range(4):
            p(f"s_lshl_b32 s{t0}, s{sWV}, 7"); p(f"s_add_u32 s{t0}, s{t0}, s{sGB}"); p(f"s_add_u32 s{t0}, s{t0}, {O_FLAG + FL_3 + tt*512}")
            self.poll(p, vF7, t0, 20)
            p(f"s_mul_i32 s{t3}, s{sWV}, 14336"); p(f"s_add_u32 s{t3}, s{t3}, s{sGB}"); p(f"s_add_u32 s{t3}, s{t3}, {O_H3 + tt*0x10000}")
            for pp in range(1, 7):
                rot7(t0, pp)
                p(f"s_lshl_b32 s{t0}, s{t0}, 11"); p(f"s_add_u32 s{t0}, s{t0}, s{t3}")
                for s_ in range(2):
                    p(f"buffer_load_dwordx4 {vr(HF+8*(pp-1)+4*s_,4)}, v{vL16}, {sr(sWS,4)}, s{t0} offen offset:{1024*s_} sc1")
            for pp in range(7):
                for s_ in range(2):
                    b = vr(OWN+8*tt+4*s_, 4) if pp == 0 else vr(HF+8*(pp-1)+4*s_, 4)
                    for dt in range(2):
                        first = pp == 0 and s_ == 0
                        p(f"v_mfma_f32_32x32x16_bf16 {vr(A4+16*dt,16)}, {ar(w4f(pp,s_,dt),4)}, {b}, {'0' if first else vr(A4+16*dt,16)}")
            for jj in range(4):
                p(f"v_xor_b32 v20, {32*jj}, v{vRW}")
                for dt in range(2):
                    p(f"ds_write_b128 v20, {vr(A4+16*dt+4*jj,4)} offset:{L_RED[tt&1] + 128*dt}")
            p.waitlgkm()
            p("s_barrier")
            for u in range(4):
                p(f"ds_read_b128 {vr(RD+8*u,4)}, v{vRR0} offset:{L_RED[tt&1] + u*8192}")
                p(f"ds_read_b128 {vr(RD+8*u+4,4)}, v{vRR1} offset:{L_RED[tt&1] + u*8192}")
            gb = sGB if tt < 2 else sPB
            p(f"s_lshl_b32 s{t0}, s{sJ}, 14"); p(f"s_lshl_b32 s{t1}, s{sWV}, 11"); p(f"s_add_u32 s{t0}, s{t0}, s{t1}")
            p(f"s_add_u32 s{t0}, s{t0}, s{gb}"); p(f"s_add_u32 s{t0}, s{t0}, {O_PART + (tt&1)*8192}")
            p(f"s_lshl_b32 s{t3}, s{sJ}, 7"); p(f"s_lshl_b32 s{t1}, s{sWV}, 2"); p(f"s_add_u32 s{t3}, s{t3}, s{t1}")
            p(f"s_add_u32 s{t3}, s{t3}, s{gb}"); p(f"s_add_u32 s{t3}, s{t3}, {O_FLAG + FL_P + (tt&1)*16}")
            if tt >= 2:
                self.poll(p, vZ, t3, 20)
                for e in range(2):
                    p(f"buffer_load_dwordx4 {vr(PT+4*e,4)}, v{vL16}, {sr(sWS,4)}, s{t0} offen offset:{1024*e} sc1")
            for u in range(1, 4):
                for i in range(8): p(f"v_add_f32 v{RD+i}, v{RD+i}, v{RD+8*u+i}")
            if tt < 2:
                for e in range(2):
                    p(f"buffer_store_dwordx4 {vr(RD+4*e,4)}, v{vL16}, {sr(sWS,4)}, s{t0} offen offset:{1024*e} sc1")
                p.waitvm()
                self.flag(p, t3, vTAG, vZ, "sc1")
            else:
                for i in range(8): p(f"v_add_f32 v{RD+i}, v{RD+i}, v{PT+i}")
                for i in range(4):
                    p(f"v_lshlrev_b32 v20, 16, v{RS+4*(tt-2)+i}"); p(f"v_and_b32 v21, 0xffff0000, v{RS+4*(tt-2)+i}")
                    p(f"v_add_f32 v{RD+2*i}, v{RD+2*i}, v20"); p(f"v_add_f32 v{RD+2*i+1}, v{RD+2*i+1}, v21")
                for i in range(4): p(f"v_cvt_pk_bf16_f32 v{PT+8+i}, v{RD+2*i}, v{RD+2*i+1}")
                p(f"s_lshl_b32 s{t0}, s{sPG}, 6"); p(f"s_lshl_b32 s{t1}, s{sWV}, 3"); p(f"s_add_u32 s{t0}, s{t0}, s{t1}"); p(f"s_add_u32 s{t0}, s{t0}, {(tt&1)*32}")
                p(f"s_mul_i32 s{t0}, s{t0}, 896"); p(f"s_lshl_b32 s{t1}, s{sJ}, 7"); p(f"s_add_u32 s{t0}, s{t0}, s{t1}")
                p(f"buffer_store_dwordx4 {vr(PT+8,4)}, v{vO}, {sr(sOUT,4)}, s{t0} offen sc1")
        self.stamp(p, "g4")
        p(f"s_or_b32 s{t0}, s{sHALF}, s{sJ}"); p(f"s_or_b32 s{t0}, s{t0}, s{sWV}"); p(f"s_cmp_eq_u32 s{t0}, 0")
        p("s_cbranch_scc0 Lnobump")
        p(f"s_lshr_b32 s{t0}, s{sG}, 1"); p(f"s_lshl_b32 s{t0}, s{t0}, 7"); p(f"s_add_u32 s{t0}, s{t0}, {O_EPOCH}")
        self.flag(p, t0, vTAG, vZ, "sc1")
        p.label("Lnobump")
        if self.stamps:
            p.waitvm()
            self.stamp(p, "end")
            p("s_memrealtime s[4:5]")
            p("s_waitcnt lgkmcnt(0)")
            p(f"s_lshl_b32 s{t0}, s2, 2"); p(f"s_add_u32 s{t0}, s{t0}, s{sWV}"); p(f"s_lshl_b32 s{t0}, s{t0}, 7"); p(f"s_add_u32 s{t0}, s{t0}, {O_STAMP}")
            for i in range(self.ns):
                p(f"v_mov_b32 v20, s{STAMP0+2*i}")
                p(f"buffer_store_dword v20, v{vZ}, {sr(sWS,4)}, s{t0} offen offset:{4*i}")
            p("v_mov_b32 v20, s4")
            p(f"buffer_store_dword v20, v{vZ}, {sr(sWS,4)}, s{t0} offen offset:124")
        p.label("Lend")
        body = finalize(p, verbose=True)
        hdr = f"; @launch grid=(224,1,1) block=(256,1,1) lds={L_END}\n"
        if self.stamps: hdr += "; stamps: " + " ".join(self.names) + "\n"
        return hdr + HEAD + kernel(KN, body, vgpr=512, accum=256)

if __name__ == "__main__":
    opts = dict(a.split("=") for a in sys.argv[2:])
    g = Gen(**{k: bool(int(v)) for k, v in opts.items()})
    open(sys.argv[1], "w").write(g.build())
```
